```python
import torch

def _softmax(x, axis=-1):
    return torch.softmax(x, dim=axis)
def _gelu(x):
    return torch.nn.functional.gelu(x, approximate="tanh")
def _silu(x):
    return torch.nn.functional.silu(x)
def _sigmoid(x):
    return torch.sigmoid(x)
def _layernorm(x, axis=-1, eps=1e-5):
    m = x.mean(dim=axis, keepdim=True)
    v = x.var(dim=axis, keepdim=True, unbiased=False)
    return (x - m) / torch.sqrt(v + eps)
def _scatter_add(tgt, idx, src, axis=0):
    return tgt.clone().index_add_(axis, idx, src)
def _segment_sum(src, seg, n):
    out = torch.zeros((n,) + src.shape[1:], dtype=src.dtype)
    return out.index_add_(0, seg, src)
def _pad(x, pw):
    flat = tuple(v for pair in reversed(pw) for v in pair)
    return torch.nn.functional.pad(x, flat)

kernel_name = 'sequential_preLN__compressed_kv_cla__dense_activation_relu__prompt'

def setup_inputs():

    _w = (lambda a: (lambda t: t.to(torch.bfloat16) if t.is_floating_point() else t)(torch.as_tensor(a)))
    def _A_setup():
        B, H, Sq, Sk, D, M = 1, 32, 2048, 2048, 128, 576
        Dc = 4 * D
        return {
            "x": _w((lambda *s: torch.randn(*s, dtype=torch.bfloat16) * 0.05)(B, Sq, M)),
            "c_kv": _w((lambda *s: torch.randn(*s, dtype=torch.bfloat16) * 0.4)(B, Sk, Dc)),
            "w_q": _w((lambda *s: torch.randn(*s, dtype=torch.bfloat16) * 3.2)(M, H, D) * (M ** -0.5)),
            "w_uk": _w((lambda *s: torch.randn(*s, dtype=torch.bfloat16) * 3.2)(Dc, H, D) * (Dc ** -0.5)),
            "w_uv": _w((lambda *s: torch.randn(*s, dtype=torch.bfloat16) * 0.4)(Dc, H, D) * (Dc ** -0.5)),
            "w_o": _w((lambda *s: torch.randn(*s, dtype=torch.bfloat16) * 0.4)(H, D, M) * ((H * D) ** -0.5)),
        }
    _A_in = _A_setup()

    def _B_setup():
        B, S, D, Dff = 1, 2048, 576, 4608
        return {
            "x": _w((lambda *s: torch.randn(*s, dtype=torch.bfloat16) * 0.05)(B, S, D)),
            "w1": _w((lambda *s: torch.randn(*s, dtype=torch.bfloat16) * 0.05)(D, Dff)),
            "w2": _w((lambda *s: torch.randn(*s, dtype=torch.bfloat16) * 0.05)(Dff, D)),
        }
    _B_in = _B_setup()

    return {
        "A_x": _A_in["x"],
        "A_c_kv": _A_in["c_kv"],
        "A_w_q": _A_in["w_q"],
        "A_w_uk": _A_in["w_uk"],
        "A_w_uv": _A_in["w_uv"],
        "A_w_o": _A_in["w_o"],
        "B_x": _B_in["x"],
        "B_w1": _B_in["w1"],
        "B_w2": _B_in["w2"],
    }

def reference(A_x, A_c_kv, A_w_q, A_w_uk, A_w_uv, A_w_o, B_x, B_w1, B_w2):
    def _A_ref(x, c_kv, w_q, w_uk, w_uv, w_o):
        B, Sq, M = x.shape[0], x.shape[1], x.shape[2]
        Sk = c_kv.shape[1]
        H, D = w_q.shape[1], w_q.shape[2]
        q = torch.einsum("bqm,mhd->bhqd", x, w_q)
        k = torch.einsum("bkc,chd->bhkd", c_kv, w_uk)
        v = torch.einsum("bkc,chd->bhkd", c_kv, w_uv)
        scores = torch.einsum("bhqd,bhkd->bhqk", q, k) * (D ** -0.5)
        off = Sk - Sq
        qi = torch.arange(Sq)[:, None]
        kj = torch.arange(Sk)[None, :]
        cmask = kj <= (qi + off)
        scores = torch.where(cmask[None, None], scores, -1e9)
        p = _softmax(scores, axis=-1)
        ctx = torch.einsum("bhqk,bhkd->bhqd", p, v)
        return torch.einsum("bhqd,hdm->bqm", ctx, w_o)

    def _B_ref(x, w1, w2):
        h = torch.einsum("bsd,df->bsf", x, w1)
        zero = torch.zeros_like(h)
        h = torch.maximum(h, zero)
        return torch.einsum("bsf,fd->bsd", h, w2)

    x = A_x
    h = x + _A_ref(_layernorm(x, axis=-1), A_c_kv, A_w_q, A_w_uk, A_w_uv, A_w_o)
    h2 = h + _B_ref(_layernorm(h, axis=-1), B_w1, B_w2)
    return h2
```

```python
import re

def regs(tok):
    tok = tok.strip()
    m = re.fullmatch(r'([vsa])(\d+)', tok)
    if m: return {m.group(1) + m.group(2)}
    m = re.fullmatch(r'([vsa])\[(\d+):(\d+)\]', tok)
    if m: return {m.group(1) + str(i) for i in range(int(m.group(2)), int(m.group(3)) + 1)}
    if tok in ('vcc', 'vcc_lo', 'vcc_hi'): return {'vcc'}
    if tok in ('exec', 'exec_lo', 'exec_hi'): return {'exec'}
    if tok == 'm0': return {'m0'}
    return set()

TRANS = ('v_exp_f32', 'v_log_f32', 'v_rcp_f32', 'v_rsq_f32', 'v_sqrt_f32', 'v_sin_f32', 'v_cos_f32')

class Ins:
    __slots__ = ('text', 'op', 'kind', 'dst', 'src', 'srcab', 'srcc', 'passes', 'dpp', 'lds', 'wide', 'nop')
    def __init__(self, text):
        self.text = text
        t = text.split(';')[0].strip()
        self.op = t.split()[0] if t else ''
        op = self.op
        rest = t[len(op):].strip()
        ops = [o.strip() for o in re.split(r',(?![^\[]*\])', rest)] if rest else []
        ops2 = []
        for o in ops:
            parts = o.split()
            ops2.append(parts[0] if parts else '')
        mods = rest
        self.dst = set(); self.src = set(); self.srcab = set(); self.srcc = set()
        self.passes = 0; self.dpp = False; self.lds = False; self.wide = False; self.nop = 1
        def R(x): return regs(x.lstrip('-').strip('|'))
        if op.endswith(':') or op.startswith('.') or op == '':
            self.kind = 'label' if op.endswith(':') else 'dir'; self.nop = 0
        elif op.startswith('v_mfma'):
            self.kind = 'mfma'
            self.passes = 8 if '32x32x16' in op else 4
            self.dst = R(ops2[0]); self.srcab = R(ops2[1]) | R(ops2[2]); self.srcc = R(ops2[3])
            self.src = self.srcab | self.srcc
        elif op.startswith('v_'):
            self.kind = 'trans' if op.replace('_e32', '').replace('_e64', '') in TRANS else 'valu'
            self.dpp = ('row_' in mods or 'quad_perm' in mods or 'wave_' in mods or '_dpp' in op)
            if op.startswith('v_cmp'):
                self.dst = R(ops2[0]); self.src = set().union(*[R(o) for o in ops2[1:]])
                if op.startswith('v_cmpx'): self.dst |= {'exec'}
            elif op.startswith('v_permlane') and 'swap' in op:
                self.dst = R(ops2[0]) | R(ops2[1]); self.src = set(self.dst)
            elif op.startswith('v_add_co') or op.startswith('v_sub_co') or op.startswith('v_addc_co'):
                self.dst = R(ops2[0]) | R(ops2[1]); self.src = set().union(*[R(o) for o in ops2[2:]])
            else:
                self.dst = R(ops2[0]); self.src = set().union(*[R(o) for o in ops2[1:]]) if len(ops2) > 1 else set()
                if op.startswith('v_cndmask') and len(ops2) == 3: self.src |= {'vcc'}
                if op.startswith('v_fmac') or op.startswith('v_dot2c') or op.startswith('v_pk_fmac') or self.dpp or op.startswith('v_writelane'):
                    self.src |= self.dst
        elif op.startswith('buffer_') or op.startswith('global_'):
            self.kind = 'vmem'
            self.lds = bool(re.search(r'\blds\b', mods))
            if 'store' in op:
                self.src = set().union(*[R(o) for o in ops2]); self.wide = ('x4' in op or 'x3' in op)
                self.srcc = R(ops2[0])
            elif self.lds:
                self.src = set().union(*[R(o) for o in ops2]) | {'m0'}
            else:
                self.dst = R(ops2[0]); self.src = set().union(*[R(o) for o in ops2[1:]])
        elif op.startswith('ds_'):
            self.kind = 'ds'
            if 'read' in op or 'bpermute' in op or 'swizzle' in op or 'permute' in op:
                self.dst = R(ops2[0]); self.src = set().union(*[R(o) for o in ops2[1:]]) if len(ops2) > 1 else set()
            else:
                self.src = set().union(*[R(o) for o in ops2])
        elif op == 's_nop':
            self.kind = 'salu'; self.nop = int(ops2[0], 0) + 1
        elif op.startswith('s_'):
            self.kind = 'salu'
            if op.startswith('s_cbranch') or op == 's_branch': self.kind = 'branch'
            elif op.startswith('s_cmp') or op in ('s_barrier', 's_waitcnt', 's_endpgm', 's_setprio', 's_sleep'):
                self.src = set().union(*[R(o) for o in ops2]) if ops2 else set()
            else:
                self.dst = R(ops2[0]); self.src = set().union(*[R(o) for o in ops2[1:]]) if len(ops2) > 1 else set()
        else:
            raise ValueError('unknown instr: ' + text)

def need(p, c):
    n = 0
    pv = p.kind in ('valu', 'trans')
    cv = c.kind in ('valu', 'trans')
    vd = {r for r in p.dst if r[0] in 'va' and r != 'vcc'}
    sd = {r for r in p.dst if r[0] == 's' or r == 'vcc'}
    if pv:
        if c.kind == 'mfma' and (vd & c.src): n = max(n, 2)
        if c.kind == 'mfma' and 'exec' in p.dst: n = max(n, 4)
        if c.kind == 'mfma' and p.op.startswith('v_pk_') and 'op_sel' in p.text: n = max(n, 1)
        if p.kind == 'trans' and c.kind in ('valu', 'mfma') and (vd & c.src): n = max(n, 1)
        if p.kind == 'trans' and c.kind in ('vmem', 'ds') and (vd & c.src): n = max(n, 1)
        if cv and c.dpp and (vd & c.src): n = max(n, 2)
        if p.op.startswith('v_dot') and c.op != p.op and c.kind in ('valu', 'trans', 'vmem', 'ds', 'mfma') and (vd & (c.src | c.dst)): n = max(n, 3)
        if cv and c.dpp and 'exec' in p.dst: n = max(n, 5)
        if cv and c.op.startswith('v_permlane') and (vd & c.src): n = max(n, 2)
        if cv and (c.op.startswith('v_readlane') or c.op.startswith('v_readfirstlane')) and (vd & c.src): n = max(n, 1)
        if cv and (sd & c.src): n = max(n, 4 if 'lane' in c.op else 2)
        if c.kind == 'vmem' and (sd & c.src): n = max(n, 5)
        if 'exec' in p.dst and cv and 'lane' in c.op: n = max(n, 4)
    if p.kind == 'salu' and 'm0' in p.dst and c.kind == 'vmem' and c.lds: n = max(n, 1)
    if p.kind == 'vmem' and p.wide and (p.srcc & c.dst): n = max(n, 2)
    if p.kind == 'mfma':
        big = p.passes == 8
        if c.kind == 'mfma':
            if p.dst & c.srcab: n = max(n, 12 if big else 8)
            if (p.dst & c.srcc) and not (p.dst == c.srcc and p.passes == c.passes): n = max(n, 10 if big else 6)
            if (p.dst & c.dst) and not (p.dst == c.srcc): n = max(n, 12 if big else 8)
        elif c.kind in ('valu', 'trans', 'vmem', 'ds'):
            if p.dst & (c.src | c.dst): n = max(n, 12 if big else 8)
            if cv and (p.srcc & c.dst): n = max(n, 7 if big else 3)
    return n

def pad_hazards(lines):
    ins = [Ins(l) for l in lines]
    labels = {}
    out = []
    W = 14
    def window(lst):
        res = []; d = 0
        for q in reversed(lst):
            if q.nop == 0: continue
            res.append((q, d)); d += q.nop
            if d > W: break
        return res
    for c in ins:
        if c.nop:
            req = 0
            for q, d in window(out[-40:]):
                r = need(q, c) - d
                if r > req: req = r
            while req > 0:
                k = min(req, 16)
                out.append(Ins(f'    s_nop {k-1}')); req -= k
        out.append(c)
    pos = {}
    for i, c in enumerate(out):
        if c.kind == 'label': pos[c.op[:-1]] = i
    fix = {}
    for i, c in enumerate(out):
        if c.kind == 'branch':
            tgt = c.text.split(';')[0].split()[-1]
            if tgt not in pos: continue
            win = window(out[max(0, i - 40):i + 1])
            d2 = 0; j = pos[tgt]; req = 0
            while j < len(out) and d2 <= W:
                t = out[j]
                if t.nop:
                    for q, d in win:
                        r = need(q, t) - d - d2
                        if r > req: req = r
                    d2 += t.nop
                    if t.op in ('s_branch', 's_endpgm'): break
                j += 1
            if req > 0: fix[i] = req
    res = []
    for i, c in enumerate(out):
        if i in fix:
            r = fix[i]
            while r > 0:
                k = min(r, 16); res.append(f'    s_nop {k-1}'); r -= k
        res.append(c.text)
    return res

class G:
    def __init__(self):
        self.L = []; self.vm = 0; self.lg = 0; self.vm_done = 0; self.lg_done = 0
    def e(self, s):
        for x in s.split('\n'):
            x = x.strip()
            if x: self.L.append(x if x.endswith(':') else '    ' + x)
    def label(self, s): self.L.append(s + ':')
    def vmem(self, s):
        self.e(s); self.vm += 1; return self.vm
    def lds(self, s):
        self.e(s); self.lg += 1; return self.lg
    def wait(self, vm=None, lg=None):
        parts = []
        if vm is not None and vm > self.vm_done:
            n = self.vm - vm
            parts.append(f'vmcnt({min(n, 63)})'); self.vm_done = max(self.vm_done, self.vm - min(n, 63))
        if lg is not None and lg > self.lg_done:
            n = self.lg - lg
            parts.append(f'lgkmcnt({min(n, 15)})'); self.lg_done = max(self.lg_done, self.lg - min(n, 15))
        if parts: self.e('s_waitcnt ' + ' '.join(parts))
    def wait_all_lds(self):
        self.wait(lg=self.lg)
    def wait_all_vm(self):
        self.wait(vm=self.vm)
    def reset_counts(self):
        self.vm = self.lg = self.vm_done = self.lg_done = 0

def vr(a, n=1): return f'v{a}' if n == 1 else f'v[{a}:{a+n-1}]'
def sr(a, n=1): return f's{a}' if n == 1 else f's[{a}:{a+n-1}]'

def kernel_desc(name, nv, ns=96, na=0):
    acc = (nv + 3) // 4 * 4
    assert acc <= 256
    if na: nv = acc + na
    return f""".amdhsa_kernel {name}
  .amdhsa_next_free_vgpr {nv}
  .amdhsa_next_free_sgpr {ns}
  .amdhsa_accum_offset {acc}
  .amdhsa_group_segment_fixed_size 0
  .amdhsa_kernarg_size 96
  .amdhsa_user_sgpr_count 2
  .amdhsa_user_sgpr_kernarg_segment_ptr 1
  .amdhsa_system_sgpr_workgroup_id_x 1
.end_amdhsa_kernel"""
```

```python
from asmlib import *

KV_OFF = 0;            KV_SZ = 32 << 20
XN_OFF = 0x2000000;    XN_SZ = 2048 * 576 * 2
CTX_OFF = 0x2400000;   CTX_SZ = 2048 * 4096 * 2
HF_OFF = 0x3800000;    HF_SZ = 2048 * 576 * 2
ST_OFF = 0x4000000;    ST_SZ = 18 * 2048 * 8
CS_OFF = 0x4100000;    CS_SZ = 4608 * 4
RS_OFF = 0x4200000;    RS_SZ = 2048 * 4
import os
HID_OFF = int(os.environ.get('HID_OFF', '0'), 0);   HID_SZ = 2048 * 4608 * 2

MF32 = 'v_mfma_f32_32x32x16_bf16'
MF16 = 'v_mfma_f32_16x16x32_bf16'

def srd(g, d, lo, size, off=0):
    if off:
        g.e(f's_add_u32 s{d}, s{lo}, {hex(off)}')
        g.e(f's_addc_u32 s{d+1}, s{lo+1}, 0')
    else:
        g.e(f's_mov_b32 s{d}, s{lo}')
        g.e(f's_mov_b32 s{d+1}, s{lo+1}')
    g.e(f's_mov_b32 s{d+2}, {hex(size)}')
    g.e(f's_mov_b32 s{d+3}, 0x00020000')

def allreduce(g, v, t, op='v_add_f32', full=True):
    for c in ('quad_perm:[1,0,3,2]', 'quad_perm:[2,3,0,1]', 'row_half_mirror', 'row_mirror'):
        g.e(f'{op}_dpp v{v}, v{v}, v{v} {c} row_mask:0xf bank_mask:0xf')
    if full:
        for sw in ('v_permlane16_swap_b32', 'v_permlane32_swap_b32'):
            g.e(f'v_mov_b32 v{t}, v{v}')
            g.e(f'{sw} v{v}, v{t}')
            g.e(f'{op} v{v}, v{v}, v{t}')

def mfma_stream(g, items, bufs, D, fillers=None):
    N = len(items)
    tok = [None] * N
    nb = len(bufs)
    assert D <= nb - 1
    for i in range(-D, N):
        if i >= 0:
            it = items[i]
            b = bufs[i % nb]
            if tok[i] is not None: g.wait(lg=tok[i])
            g.e(it['mfma'].format(b=vr(b, 4)))
            if it.get('post'): it['post']()
        j = i + D
        if j < N:
            it = items[j]
            b = bufs[j % nb]
            if it.get('pre'): it['pre']()
            for r in it['reads']:
                tok[j] = g.lds(r.format(b=vr(b, 4), b0=vr(b, 2), b1=vr(b + 2, 2)))
        if fillers and i in fillers:
            for f in fillers[i]:
                if callable(f): f()
                else: g.e(f)

def spread(ops, start, end):
    d = {}
    n = len(ops); span = end - start
    for k, o in enumerate(ops):
        d.setdefault(start + (k * span) // n, []).append(o)
    return d

TS_OFF = 0x8000000
TS_BASE = 72
PROF = [False]
def ts(g, idx):
    if PROF[0]: g.e(f's_memtime s[{TS_BASE + 2*idx}:{TS_BASE + 2*idx + 1}]')
def tsr(g, idx):
    if PROF[0]: g.e(f's_memrealtime s[{TS_BASE + 2*idx}:{TS_BASE + 2*idx + 1}]')
def ts_dump(g, n, kidx, wsp, wave_s, vt=1):
    if not PROF[0]: return
    g.e('s_waitcnt lgkmcnt(0)')
    srd(g, 64, wsp, 1 << 20, TS_OFF + (kidx << 20))
    g.e(f's_lshl_b32 s68, s2, 4\ns_add_u32 s68, s68, s{wave_s}\ns_lshl_b32 s68, s68, 6')
    g.e(f'v_mov_b32 v{vt}, 0')
    for i in range(n):
        g.e(f'v_mov_b32 v{vt+1}, s{TS_BASE + 2*i}')
        g.e(f'buffer_store_dword v{vt+1}, v{vt}, s[64:67], s68 offen offset:{4*i}')

def ar(a, n=1): return f'a{a}' if n == 1 else f'a[{a}:{a+n-1}]'
def xreduce4(g, regs, tmps, op='v_add_f32'):
    for sw in ('v_permlane16_swap_b32', 'v_permlane32_swap_b32'):
        for v, t in zip(regs, tmps): g.e(f'v_mov_b32 v{t}, v{v}')
        for v, t in zip(regs, tmps): g.e(f'{sw} v{v}, v{t}')
        for v, t in zip(regs, tmps): g.e(f'{op} v{v}, v{v}, v{t}')

PART_OFF = 0x1400000
FL_OFF = 0x4300000
```

```python
import sys, importlib
from common import *
OUT = 'sequential_preLN__compressed_kv_cla__dense_activation_relu__prompt.s'
def build(mods, out=OUT, opts=None):
    opts = opts or {}
    heads = []; body = []; descs = []
    for m in mods:
        mod = importlib.import_module(m)
        L, launch, desc = mod.gen(**opts.get(m, {}))
        L = pad_hazards(L)
        if launch is None:
            body.append('\n'.join(L)); continue
        heads.append(launch)
        body.append(f'.globl {mod.NAME}\n.p2align 8\n.type {mod.NAME},@function\n' + '\n'.join(L))
        descs.append('.p2align 6\n' + desc)
    s = '; generated by dev/gen.py' + (' prof' if PROF[0] else '') + '\n' + '\n'.join(heads) + '\n.amdgcn_target "amdgcn-amd-amdhsa--gfx950"\n.text\n'
    s += '\n'.join(body) + '\nCODE_END:\n.section .rodata,"a"\n' + '\n'.join(descs) + '\n'
    open(out, 'w').write(s)
    return s
if __name__ == '__main__':
    mods = sys.argv[1].split(',') if len(sys.argv) > 1 else ['k1', 'k2', 'k3', 'k4', 'k5']
    out = sys.argv[2] if len(sys.argv) > 2 else OUT
    if len(sys.argv) > 3 and sys.argv[3] == 'prof': PROF[0] = True
    import os
    s = build(mods, out, eval(os.environ.get('OPTS', '{}')))
    print('lines', s.count('\n'), 'bytes', len(s))
```

```python
from asmlib import *

KV_OFF = 0;            KV_SZ = 32 << 20
XN_OFF = 0x2000000;    XN_SZ = 2048 * 576 * 2
CTX_OFF = 0x2400000;   CTX_SZ = 2048 * 4096 * 2
HF_OFF = 0x3800000;    HF_SZ = 2048 * 576 * 2
ST_OFF = 0x4000000;    ST_SZ = 18 * 2048 * 8
CS_OFF = 0x4100000;    CS_SZ = 4608 * 4
RS_OFF = 0x4200000;    RS_SZ = 2048 * 4
import os
HID_OFF = int(os.environ.get('HID_OFF', '0'), 0);   HID_SZ = 2048 * 4608 * 2

MF32 = 'v_mfma_f32_32x32x16_bf16'
MF16 = 'v_mfma_f32_16x16x32_bf16'

def srd(g, d, lo, size, off=0):
    if off:
        g.e(f's_add_u32 s{d}, s{lo}, {hex(off)}')
        g.e(f's_addc_u32 s{d+1}, s{lo+1}, 0')
    else:
        g.e(f's_mov_b32 s{d}, s{lo}')
        g.e(f's_mov_b32 s{d+1}, s{lo+1}')
    g.e(f's_mov_b32 s{d+2}, {hex(size)}')
    g.e(f's_mov_b32 s{d+3}, 0x00020000')

def allreduce(g, v, t, op='v_add_f32', full=True):
    for c in ('quad_perm:[1,0,3,2]', 'quad_perm:[2,3,0,1]', 'row_half_mirror', 'row_mirror'):
        g.e(f'{op}_dpp v{v}, v{v}, v{v} {c} row_mask:0xf bank_mask:0xf')
    if full:
        for sw in ('v_permlane16_swap_b32', 'v_permlane32_swap_b32'):
            g.e(f'v_mov_b32 v{t}, v{v}')
            g.e(f'{sw} v{v}, v{t}')
            g.e(f'{op} v{v}, v{v}, v{t}')

def mfma_stream(g, items, bufs, D, fillers=None):
    N = len(items)
    tok = [None] * N
    nb = len(bufs)
    assert D <= nb - 1
    for i in range(-D, N):
        if i >= 0:
            it = items[i]
            b = bufs[i % nb]
            if tok[i] is not None: g.wait(lg=tok[i])
            g.e(it['mfma'].format(b=vr(b, 4)))
            if it.get('post'): it['post']()
        j = i + D
        if j < N:
            it = items[j]
            b = bufs[j % nb]
            if it.get('pre'): it['pre']()
            for r in it['reads']:
                tok[j] = g.lds(r.format(b=vr(b, 4), b0=vr(b, 2), b1=vr(b + 2, 2)))
        if fillers and i in fillers:
            for f in fillers[i]:
                if callable(f): f()
                else: g.e(f)

def spread(ops, start, end):
    d = {}
    n = len(ops); span = end - start
    for k, o in enumerate(ops):
        d.setdefault(start + (k * span) // n, []).append(o)
    return d

TS_OFF = 0x8000000
TS_BASE = 72
PROF = [False]
def ts(g, idx):
    if PROF[0]: g.e(f's_memtime s[{TS_BASE + 2*idx}:{TS_BASE + 2*idx + 1}]')
def tsr(g, idx):
    if PROF[0]: g.e(f's_memrealtime s[{TS_BASE + 2*idx}:{TS_BASE + 2*idx + 1}]')
def ts_dump(g, n, kidx, wsp, wave_s, vt=1):
    if not PROF[0]: return
    g.e('s_waitcnt lgkmcnt(0)')
    srd(g, 64, wsp, 1 << 20, TS_OFF + (kidx << 20))
    g.e(f's_lshl_b32 s68, s2, 4\ns_add_u32 s68, s68, s{wave_s}\ns_lshl_b32 s68, s68, 6')
    g.e(f'v_mov_b32 v{vt}, 0')
    for i in range(n):
        g.e(f'v_mov_b32 v{vt+1}, s{TS_BASE + 2*i}')
        g.e(f'buffer_store_dword v{vt+1}, v{vt}, s[64:67], s68 offen offset:{4*i}')

def ar(a, n=1): return f'a{a}' if n == 1 else f'a[{a}:{a+n-1}]'
def xreduce4(g, regs, tmps, op='v_add_f32'):
    for sw in ('v_permlane16_swap_b32', 'v_permlane32_swap_b32'):
        for v, t in zip(regs, tmps): g.e(f'v_mov_b32 v{t}, v{v}')
        for v, t in zip(regs, tmps): g.e(f'{sw} v{v}, v{t}')
        for v, t in zip(regs, tmps): g.e(f'{op} v{v}, v{v}, v{t}')

PART_OFF = 0x1400000
FL_OFF = 0x4300000

def code_pf(g, tag, v, sp, n=1, step=32768):
    g.e(f's_getpc_b64 s[{sp}:{sp+1}]')
    g.label(f'{tag}_PC0')
    g.e(f'v_lshlrev_b32 v{v}, 7, v0')
    for i in range(1, n): g.e(f'v_add_u32 v{v+i}, {i * step}, v{v}')
    for i in range(n):
        g.e(f'v_min_u32 v{v+i}, CODE_END-{tag}_PC0-4, v{v+i}')
        g.vmem(f'global_load_dword v{v+i}, v{v+i}, s[{sp}:{sp+1}]')

W9_OFF = 0x4400000
PART3_OFF = int(os.environ.get('PART3', '0x1000000'), 0)
PART5_OFF = int(os.environ.get('PART5', '0x2400000'), 0)
CSP_OFF = 0x4100000
```

```python
from asmlib import *

KV_OFF = 0;            KV_SZ = 32 << 20
XN_OFF = 0x2000000;    XN_SZ = 2048 * 576 * 2
CTX_OFF = 0x2400000;   CTX_SZ = 2048 * 4096 * 2
HF_OFF = 0x3800000;    HF_SZ = 2048 * 576 * 2
ST_OFF = 0x4000000;    ST_SZ = 18 * 2048 * 8
CS_OFF = 0x4100000;    CS_SZ = 4608 * 4
RS_OFF = 0x4200000;    RS_SZ = 2048 * 4
import os
HID_OFF = int(os.environ.get('HID_OFF', '0'), 0);   HID_SZ = 2048 * 4608 * 2

MF32 = 'v_mfma_f32_32x32x16_bf16'
MF16 = 'v_mfma_f32_16x16x32_bf16'

def srd(g, d, lo, size, off=0):
    if off:
        g.e(f's_add_u32 s{d}, s{lo}, {hex(off)}')
        g.e(f's_addc_u32 s{d+1}, s{lo+1}, 0')
    else:
        g.e(f's_mov_b32 s{d}, s{lo}')
        g.e(f's_mov_b32 s{d+1}, s{lo+1}')
    g.e(f's_mov_b32 s{d+2}, {hex(size)}')
    g.e(f's_mov_b32 s{d+3}, 0x00020000')

def allreduce(g, v, t, op='v_add_f32', full=True):
    for c in ('quad_perm:[1,0,3,2]', 'quad_perm:[2,3,0,1]', 'row_half_mirror', 'row_mirror'):
        g.e(f'{op}_dpp v{v}, v{v}, v{v} {c} row_mask:0xf bank_mask:0xf')
    if full:
        for sw in ('v_permlane16_swap_b32', 'v_permlane32_swap_b32'):
            g.e(f'v_mov_b32 v{t}, v{v}')
            g.e(f'{sw} v{v}, v{t}')
            g.e(f'{op} v{v}, v{v}, v{t}')

def mfma_stream(g, items, bufs, D, fillers=None):
    N = len(items)
    tok = [None] * N
    nb = len(bufs)
    assert D <= nb - 1
    for i in range(-D, N):
        if i >= 0:
            it = items[i]
            b = bufs[i % nb]
            if tok[i] is not None: g.wait(lg=tok[i])
            g.e(it['mfma'].format(b=vr(b, 4)))
            if it.get('post'): it['post']()
        j = i + D
        if j < N:
            it = items[j]
            b = bufs[j % nb]
            if it.get('pre'): it['pre']()
            for r in it['reads']:
                tok[j] = g.lds(r.format(b=vr(b, 4), b0=vr(b, 2), b1=vr(b + 2, 2)))
        if fillers and i in fillers:
            for f in fillers[i]:
                if callable(f): f()
                else: g.e(f)

def spread(ops, start, end):
    d = {}
    n = len(ops); span = end - start
    for k, o in enumerate(ops):
        d.setdefault(start + (k * span) // n, []).append(o)
    return d

TS_OFF = 0x8000000
TS_BASE = 72
PROF = [False]
def ts(g, idx):
    if PROF[0]: g.e(f's_memtime s[{TS_BASE + 2*idx}:{TS_BASE + 2*idx + 1}]')
def tsr(g, idx):
    if PROF[0]: g.e(f's_memrealtime s[{TS_BASE + 2*idx}:{TS_BASE + 2*idx + 1}]')
def ts_dump(g, n, kidx, wsp, wave_s, vt=1):
    if not PROF[0]: return
    g.e('s_waitcnt lgkmcnt(0)')
    srd(g, 64, wsp, 1 << 20, TS_OFF + (kidx << 20))
    g.e(f's_lshl_b32 s68, s2, 4\ns_add_u32 s68, s68, s{wave_s}\ns_lshl_b32 s68, s68, 6')
    g.e(f'v_mov_b32 v{vt}, 0')
    for i in range(n):
        g.e(f'v_mov_b32 v{vt+1}, s{TS_BASE + 2*i}')
        g.e(f'buffer_store_dword v{vt+1}, v{vt}, s[64:67], s68 offen offset:{4*i}')

def ar(a, n=1): return f'a{a}' if n == 1 else f'a[{a}:{a+n-1}]'
def xreduce4(g, regs, tmps, op='v_add_f32'):
    for sw in ('v_permlane16_swap_b32', 'v_permlane32_swap_b32'):
        for v, t in zip(regs, tmps): g.e(f'v_mov_b32 v{t}, v{v}')
        for v, t in zip(regs, tmps): g.e(f'{sw} v{v}, v{t}')
        for v, t in zip(regs, tmps): g.e(f'{op} v{v}, v{v}, v{t}')

PART_OFF = 0x1400000
FL_OFF = 0x4300000

def code_pf(g, tag, v, sp, n=1, step=32768):
    g.e(f's_getpc_b64 s[{sp}:{sp+1}]')
    g.label(f'{tag}_PC0')
    g.e(f'v_lshlrev_b32 v{v}, 7, v0')
    for i in range(1, n): g.e(f'v_add_u32 v{v+i}, {i * step}, v{v}')
    for i in range(n):
        g.e(f'v_min_u32 v{v+i}, CODE_END-{tag}_PC0-4, v{v+i}')
        g.vmem(f'global_load_dword v{v+i}, v{v+i}, s[{sp}:{sp+1}]')

W9_OFF = 0x4400000
PART3_OFF = int(os.environ.get('PART3', '0x1000000'), 0)
PART5_OFF = int(os.environ.get('PART5', '0x2400000'), 0)
CSP_OFF = 0x4100000

SEN_OFF = 0x4800000
HID2 = SEN_OFF; PA2 = HID2 + 0x1200000; PC2 = PA2 + 0xF00000; HF2 = PC2 + 0xF00000; ST2 = HF2 + 0x240000; SEN_SZ = ST2 + 0x40000 - SEN_OFF
CSF_OFF = 0x4100000

X3_OFF = 0x4800000; X3_SZ = 1 << 24
PA3 = X3_OFF; PC3 = PA3 + 256 * 27648; HF3 = PC3 + 256 * 27648; ST3 = HF3 + 2048 * 1152
assert ST3 + 0x40000 == X3_OFF + X3_SZ
MU3 = FL_OFF + 0x20000
WS3 = FL_OFF + 0x40000
```

```python
from asmlib import *

KV_OFF = 0;            KV_SZ = 32 << 20
XN_OFF = 0x2000000;    XN_SZ = 2048 * 576 * 2
CTX_OFF = 0x2400000;   CTX_SZ = 2048 * 4096 * 2
HF_OFF = 0x3800000;    HF_SZ = 2048 * 576 * 2
ST_OFF = 0x4000000;    ST_SZ = 18 * 2048 * 8
CS_OFF = 0x4100000;    CS_SZ = 4608 * 4
RS_OFF = 0x4200000;    RS_SZ = 2048 * 4
import os
HID_OFF = int(os.environ.get('HID_OFF', '0'), 0);   HID_SZ = 2048 * 4608 * 2

MF32 = 'v_mfma_f32_32x32x16_bf16'
MF16 = 'v_mfma_f32_16x16x32_bf16'

def srd(g, d, lo, size, off=0):
    if off:
        g.e(f's_add_u32 s{d}, s{lo}, {hex(off)}')
        g.e(f's_addc_u32 s{d+1}, s{lo+1}, 0')
    else:
        g.e(f's_mov_b32 s{d}, s{lo}')
        g.e(f's_mov_b32 s{d+1}, s{lo+1}')
    g.e(f's_mov_b32 s{d+2}, {hex(size)}')
    g.e(f's_mov_b32 s{d+3}, 0x00020000')

def allreduce(g, v, t, op='v_add_f32', full=True):
    for c in ('quad_perm:[1,0,3,2]', 'quad_perm:[2,3,0,1]', 'row_half_mirror', 'row_mirror'):
        g.e(f'{op}_dpp v{v}, v{v}, v{v} {c} row_mask:0xf bank_mask:0xf')
    if full:
        for sw in ('v_permlane16_swap_b32', 'v_permlane32_swap_b32'):
            g.e(f'v_mov_b32 v{t}, v{v}')
            g.e(f'{sw} v{v}, v{t}')
            g.e(f'{op} v{v}, v{v}, v{t}')

def mfma_stream(g, items, bufs, D, fillers=None):
    N = len(items)
    tok = [None] * N
    nb = len(bufs)
    assert D <= nb - 1
    for i in range(-D, N):
        if i >= 0:
            it = items[i]
            b = bufs[i % nb]
            if tok[i] is not None: g.wait(lg=tok[i])
            g.e(it['mfma'].format(b=vr(b, 4)))
            if it.get('post'): it['post']()
        j = i + D
        if j < N:
            it = items[j]
            b = bufs[j % nb]
            if it.get('pre'): it['pre']()
            for r in it['reads']:
                tok[j] = g.lds(r.format(b=vr(b, 4), b0=vr(b, 2), b1=vr(b + 2, 2)))
        if fillers and i in fillers:
            for f in fillers[i]:
                if callable(f): f()
                else: g.e(f)

def spread(ops, start, end):
    d = {}
    n = len(ops); span = end - start
    for k, o in enumerate(ops):
        d.setdefault(start + (k * span) // n, []).append(o)
    return d

TS_OFF = 0x8000000
TS_BASE = 72
PROF = [False]
def ts(g, idx):
    if PROF[0]: g.e(f's_memtime s[{TS_BASE + 2*idx}:{TS_BASE + 2*idx + 1}]')
def tsr(g, idx):
    if PROF[0]: g.e(f's_memrealtime s[{TS_BASE + 2*idx}:{TS_BASE + 2*idx + 1}]')
def ts_dump(g, n, kidx, wsp, wave_s, vt=1):
    if not PROF[0]: return
    g.e('s_waitcnt lgkmcnt(0)')
    srd(g, 64, wsp, 1 << 20, TS_OFF + (kidx << 20))
    g.e(f's_lshl_b32 s68, s2, 4\ns_add_u32 s68, s68, s{wave_s}\ns_lshl_b32 s68, s68, 6')
    g.e(f'v_mov_b32 v{vt}, 0')
    for i in range(n):
        g.e(f'v_mov_b32 v{vt+1}, s{TS_BASE + 2*i}')
        g.e(f'buffer_store_dword v{vt+1}, v{vt}, s[64:67], s68 offen offset:{4*i}')

def ar(a, n=1): return f'a{a}' if n == 1 else f'a[{a}:{a+n-1}]'
def xreduce4(g, regs, tmps, op='v_add_f32'):
    for sw in ('v_permlane16_swap_b32', 'v_permlane32_swap_b32'):
        for v, t in zip(regs, tmps): g.e(f'v_mov_b32 v{t}, v{v}')
        for v, t in zip(regs, tmps): g.e(f'{sw} v{v}, v{t}')
        for v, t in zip(regs, tmps): g.e(f'{op} v{v}, v{v}, v{t}')

PART_OFF = 0x1400000
FL_OFF = 0x4300000

def code_pf(g, tag, v, sp, n=1, step=32768):
    g.e(f's_getpc_b64 s[{sp}:{sp+1}]')
    g.label(f'{tag}_PC0')
    g.e(f'v_lshlrev_b32 v{v}, 7, v0')
    for i in range(1, n): g.e(f'v_add_u32 v{v+i}, {i * step}, v{v}')
    for i in range(n):
        g.e(f'v_min_u32 v{v+i}, CODE_END-{tag}_PC0-4, v{v+i}')
        g.vmem(f'global_load_dword v{v+i}, v{v+i}, s[{sp}:{sp+1}]')

W9_OFF = 0x4400000
PART3_OFF = int(os.environ.get('PART3', '0x1000000'), 0)
PART5_OFF = int(os.environ.get('PART5', '0x2400000'), 0)
CSP_OFF = 0x4100000

SEN_OFF = 0x4800000
HID2 = SEN_OFF; PA2 = HID2 + 0x1200000; PC2 = PA2 + 0xF00000; HF2 = PC2 + 0xF00000; ST2 = HF2 + 0x240000; SEN_SZ = ST2 + 0x40000 - SEN_OFF
CSF_OFF = 0x4100000

X3_OFF = 0x4800000; X3_SZ = 1 << 24
PA3 = X3_OFF; PC3 = PA3 + 256 * 27648; HF3 = PC3 + 256 * 27648; ST3 = HF3 + 2048 * 1152
assert ST3 + 0x40000 == X3_OFF + X3_SZ
MU3 = FL_OFF + 0x20000
WS3 = FL_OFF + 0x40000

TL = []
def tsn(g, name):
    if name in TL: ts(g, 1 + TL.index(name))
```

```python
from asmlib import *

KV_OFF = 0;            KV_SZ = 32 << 20
XN_OFF = 0x2000000;    XN_SZ = 2048 * 576 * 2
CTX_OFF = 0x2400000;   CTX_SZ = 2048 * 4096 * 2
HF_OFF = 0x3800000;    HF_SZ = 2048 * 576 * 2
ST_OFF = 0x4000000;    ST_SZ = 18 * 2048 * 8
CS_OFF = 0x4100000;    CS_SZ = 4608 * 4
RS_OFF = 0x4200000;    RS_SZ = 2048 * 4
import os
HID_OFF = int(os.environ.get('HID_OFF', '0'), 0);   HID_SZ = 2048 * 4608 * 2

MF32 = 'v_mfma_f32_32x32x16_bf16'
MF16 = 'v_mfma_f32_16x16x32_bf16'

def srd(g, d, lo, size, off=0):
    if off:
        g.e(f's_add_u32 s{d}, s{lo}, {hex(off)}')
        g.e(f's_addc_u32 s{d+1}, s{lo+1}, 0')
    else:
        g.e(f's_mov_b32 s{d}, s{lo}')
        g.e(f's_mov_b32 s{d+1}, s{lo+1}')
    g.e(f's_mov_b32 s{d+2}, {hex(size)}')
    g.e(f's_mov_b32 s{d+3}, 0x00020000')

def allreduce(g, v, t, op='v_add_f32', full=True):
    for c in ('quad_perm:[1,0,3,2]', 'quad_perm:[2,3,0,1]', 'row_half_mirror', 'row_mirror'):
        g.e(f'{op}_dpp v{v}, v{v}, v{v} {c} row_mask:0xf bank_mask:0xf')
    if full:
        for sw in ('v_permlane16_swap_b32', 'v_permlane32_swap_b32'):
            g.e(f'v_mov_b32 v{t}, v{v}')
            g.e(f'{sw} v{v}, v{t}')
            g.e(f'{op} v{v}, v{v}, v{t}')

def mfma_stream(g, items, bufs, D, fillers=None):
    N = len(items)
    tok = [None] * N
    nb = len(bufs)
    assert D <= nb - 1
    for i in range(-D, N):
        if i >= 0:
            it = items[i]
            b = bufs[i % nb]
            if tok[i] is not None: g.wait(lg=tok[i])
            g.e(it['mfma'].format(b=vr(b, 4)))
            if it.get('post'): it['post']()
        j = i + D
        if j < N:
            it = items[j]
            b = bufs[j % nb]
            if it.get('pre'): it['pre']()
            for r in it['reads']:
                tok[j] = g.lds(r.format(b=vr(b, 4), b0=vr(b, 2), b1=vr(b + 2, 2)))
        if fillers and i in fillers:
            for f in fillers[i]:
                if callable(f): f()
                else: g.e(f)

def spread(ops, start, end):
    d = {}
    n = len(ops); span = end - start
    for k, o in enumerate(ops):
        d.setdefault(start + (k * span) // n, []).append(o)
    return d

TS_OFF = 0x8000000
TS_BASE = 72
PROF = [False]
def ts(g, idx):
    if PROF[0]: g.e(f's_memtime s[{TS_BASE + 2*idx}:{TS_BASE + 2*idx + 1}]')
def tsr(g, idx):
    if PROF[0]: g.e(f's_memrealtime s[{TS_BASE + 2*idx}:{TS_BASE + 2*idx + 1}]')
def ts_dump(g, n, kidx, wsp, wave_s, vt=1):
    if not PROF[0]: return
    g.e('s_waitcnt lgkmcnt(0)')
    srd(g, 64, wsp, 1 << 20, TS_OFF + (kidx << 20))
    g.e(f's_lshl_b32 s68, s2, 4\ns_add_u32 s68, s68, s{wave_s}\ns_lshl_b32 s68, s68, 6')
    g.e(f'v_mov_b32 v{vt}, 0')
    for i in range(n):
        g.e(f'v_mov_b32 v{vt+1}, s{TS_BASE + 2*i}')
        g.e(f'buffer_store_dword v{vt+1}, v{vt}, s[64:67], s68 offen offset:{4*i}')

def ar(a, n=1): return f'a{a}' if n == 1 else f'a[{a}:{a+n-1}]'
def xreduce4(g, regs, tmps, op='v_add_f32'):
    for sw in ('v_permlane16_swap_b32', 'v_permlane32_swap_b32'):
        for v, t in zip(regs, tmps): g.e(f'v_mov_b32 v{t}, v{v}')
        for v, t in zip(regs, tmps): g.e(f'{sw} v{v}, v{t}')
        for v, t in zip(regs, tmps): g.e(f'{op} v{v}, v{v}, v{t}')

PART_OFF = 0x1400000
FL_OFF = 0x4300000

def code_pf(g, tag, v, sp, n=1, step=32768):
    g.e(f's_getpc_b64 s[{sp}:{sp+1}]')
    g.label(f'{tag}_PC0')
    g.e(f'v_lshlrev_b32 v{v}, 7, v0')
    for i in range(1, n): g.e(f'v_add_u32 v{v+i}, {i * step}, v{v}')
    for i in range(n):
        g.e(f'v_min_u32 v{v+i}, CODE_END-{tag}_PC0-4, v{v+i}')
        g.vmem(f'global_load_dword v{v+i}, v{v+i}, s[{sp}:{sp+1}]')

W9_OFF = 0x4400000
PART3_OFF = int(os.environ.get('PART3', '0x1000000'), 0)
PART5_OFF = int(os.environ.get('PART5', '0x2400000'), 0)
CSP_OFF = 0x4100000

SEN_OFF = 0x4800000
HID2 = SEN_OFF; PA2 = HID2 + 0x1200000; PC2 = PA2 + 0xF00000; HF2 = PC2 + 0xF00000; ST2 = HF2 + 0x240000; SEN_SZ = ST2 + 0x40000 - SEN_OFF
CSF_OFF = 0x4100000

X3_OFF = 0x4800000; X3_SZ = 1 << 24
PA3 = X3_OFF; PC3 = PA3 + 256 * 27648; HF3 = PC3 + 256 * 27648; ST3 = HF3 + 2048 * 1152
assert ST3 + 0x40000 == X3_OFF + X3_SZ
MU3 = FL_OFF + 0x20000
WS3 = FL_OFF + 0x40000

TL = []
def tsn(g, name):
    if name in TL: ts(g, 1 + TL.index(name))

BITF = [0]
CNT = [0]
JSC = ['']
KF = [0]
```
